```python
import torch

def _softmax(x, axis=-1):
    return torch.softmax(x, dim=axis)
def _gelu(x):
    return torch.nn.functional.gelu(x, approximate="tanh")
def _silu(x):
    return torch.nn.functional.silu(x)
def _sigmoid(x):
    return torch.sigmoid(x)
def _layernorm(x, axis=-1, eps=1e-5):
    m = x.mean(dim=axis, keepdim=True)
    v = x.var(dim=axis, keepdim=True, unbiased=False)
    return (x - m) / torch.sqrt(v + eps)
def _scatter_add(tgt, idx, src, axis=0):
    return tgt.clone().index_add_(axis, idx, src)
def _segment_sum(src, seg, n):
    out = torch.zeros((n,) + src.shape[1:], dtype=src.dtype)
    return out.index_add_(0, seg, src)
def _pad(x, pw):
    flat = tuple(v for pair in reversed(pw) for v in pair)
    return torch.nn.functional.pad(x, flat)

kernel_name = 'standalone__gqa_softmax__near_ridge'

def setup_inputs():

    _w = (lambda a: (lambda t: t.to(torch.bfloat16) if t.is_floating_point() else t)(torch.as_tensor(a)))
    B, Hq, Hkv, Sq, Sk, D = 8, 32, 8, 144, 1024, 128
    return {
        "q": _w((lambda *s: torch.randn(*s, dtype=torch.bfloat16) * 0.8)(B, Hq, Sq, D)),
        "k": _w((lambda *s: torch.randn(*s, dtype=torch.bfloat16) * 0.8)(B, Hkv, Sk, D)),
        "v": _w((lambda *s: torch.randn(*s, dtype=torch.bfloat16) * 0.05)(B, Hkv, Sk, D)),
    }

def reference(q, k, v):
    B, Hq, Sq, D = q.shape
    Hkv = k.shape[1]
    rep = Hq // Hkv
    k = (lambda x, n, axis: torch.repeat_interleave(x, n, dim=axis))(k, rep, axis=1)
    v = (lambda x, n, axis: torch.repeat_interleave(x, n, dim=axis))(v, rep, axis=1)
    scale = D ** -0.5
    scores = torch.einsum("bhqd,bhkd->bhqk", q, k) * scale
    p = _softmax(scores, axis=-1)
    return torch.einsum("bhqk,bhkd->bhqd", p, v)
```

```python
import re

REG_RE = re.compile(r'^(-)?(?:abs\()?([vas])(?:\[(\d+):(\d+)\]|(\d+))\)?$')

TRANS = ('v_exp_f32', 'v_rcp_f32', 'v_log_f32', 'v_rsq_f32', 'v_sqrt_f32')


def parse_reg(tok):
    tok = tok.strip()
    if tok in ('vcc', 'm0', 'exec', 'scc'):
        return [(tok, 0)]
    m = REG_RE.match(tok)
    if not m:
        return []
    k = m.group(2)
    if m.group(3) is not None:
        return [(k, i) for i in range(int(m.group(3)), int(m.group(4)) + 1)]
    return [(k, int(m.group(5)))]


class Ins:
    __slots__ = ('text', 'op', 'kind', 'rd', 'wr', 'passes', 'crd', 'abrd', 'states', 'cnt')

    def __init__(self, text):
        self.text = text
        t = text.split(';')[0].strip()
        self.rd, self.wr, self.crd, self.abrd = [], [], [], []
        self.passes = 0
        self.states = 1
        self.cnt = None
        if t.endswith(':') or not t or t.startswith('.'):
            self.op, self.kind, self.states = t, 'label', 0
            return
        parts = t.split(None, 1)
        op = parts[0]
        self.op = op
        rest = parts[1] if len(parts) > 1 else ''
        rest = re.sub(r'\s+(op_sel|op_sel_hi|neg_lo|neg_hi):\[[^\]]*\]', '', rest)
        ops = [o.strip() for o in rest.split(',')] if rest else []
        mods = []
        if ops:
            last = ops[-1].split()
            if last:
                ops[-1] = last[0]
                mods = last[1:]
        regs = [parse_reg(o) for o in ops]
        flat = lambda l: [r for x in l for r in x]
        if op.startswith('v_mfma'):
            self.kind = 'mfma'
            self.passes = 8 if '32x32x16' in op else 4
            self.wr = regs[0]
            self.abrd = regs[1] + regs[2]
            self.crd = regs[3]
            self.rd = self.abrd + self.crd
        elif op.startswith('v_cmp'):
            self.kind = 'valu'
            self.wr = regs[0]
            self.rd = flat(regs[1:])
        elif op.startswith('v_permlane'):
            self.kind = 'valu'
            self.wr = flat(regs)
            self.rd = flat(regs)
        elif op.startswith('v_'):
            self.kind = 'trans' if op.startswith(TRANS) else 'valu'
            self.wr = regs[0]
            self.rd = flat(regs[1:])
            if op.startswith('v_fmac') or op.startswith('v_pk_fmac'):
                self.rd += regs[0]
            if op.startswith('v_cndmask') and len(ops) == 3:
                self.rd += [('vcc', 0)]
        elif op.startswith('ds_read') or op.startswith('ds_bpermute') or op.startswith('ds_swizzle'):
            self.kind = 'ds_read'
            self.wr = regs[0]
            self.rd = flat(regs[1:])
        elif op.startswith('ds_write'):
            self.kind = 'ds_write'
            self.rd = flat(regs)
        elif op.startswith('buffer_load'):
            if 'lds' in mods:
                self.kind = 'vmem_lds'
                self.rd = flat(regs) + [('m0', 0)]
            else:
                self.kind = 'vmem_load'
                self.wr = regs[0]
                self.rd = flat(regs[1:])
        elif op.startswith('buffer_store'):
            self.kind = 'vmem_store'
            self.rd = flat(regs)
            self.crd = regs[0] if ('x4' in op or 'x3' in op) else []
        elif op.startswith('s_load') or op.startswith('s_memtime') or op.startswith('s_memrealtime'):
            self.kind = 'smem'
            self.wr = regs[0]
            self.rd = flat(regs[1:])
        elif op == 's_waitcnt':
            self.kind = 'wait'
            self.cnt = {}
            for m in re.finditer(r'(vmcnt|lgkmcnt)\((\d+)\)', t):
                self.cnt[m.group(1)] = int(m.group(2))
        elif op == 's_nop':
            self.kind = 'nop'
            self.states = int(ops[0], 0) + 1
        elif op == 's_barrier':
            self.kind = 'barrier'
        elif op.startswith('s_cbranch') or op in ('s_branch', 's_setpc_b64', 's_swappc_b64', 's_endpgm'):
            self.kind = 'branch'
            if op == 's_swappc_b64':
                self.wr = regs[0]
                self.rd = regs[1]
            elif op == 's_setpc_b64':
                self.rd = regs[0]
        elif op.startswith('s_cmp'):
            self.kind = 'salu'
            self.rd = flat(regs)
            self.wr = [('scc', 0)]
        elif op.startswith('s_'):
            self.kind = 'salu'
            if op in ('s_setprio', 's_sleep'):
                pass
            else:
                self.wr = regs[0]
                self.rd = flat(regs[1:])
        else:
            raise ValueError('unknown op ' + text)


def need_states(p, c):
    n = 0
    pv = p.kind in ('valu', 'trans')
    cv = c.kind in ('valu', 'trans')
    pw = set(p.wr)
    if p.kind == 'mfma':
        big = 12 if p.passes == 8 else 8
        if c.kind == 'mfma':
            if pw & set(c.abrd):
                n = max(n, big)
            if pw & set(c.crd):
                if p.wr == c.crd and p.passes == c.passes:
                    n = max(n, 0)
                else:
                    n = max(n, p.passes + 2)
            if (pw & set(c.wr)) and not (p.wr == c.crd and p.passes == c.passes):
                n = max(n, p.passes + 2)
        elif cv or c.kind in ('ds_write', 'vmem_store', 'vmem_load', 'ds_read', 'vmem_lds'):
            if pw & (set(c.rd) | set(c.wr)):
                n = max(n, big)
        if cv and (set(p.crd) & set(c.wr)):
            n = max(n, 7 if p.passes == 8 else 3)
    if pv:
        vw = {r for r in pw if r[0] in 'va'}
        sw = {r for r in pw if r[0] in ('s', 'vcc')}
        if c.kind == 'mfma' and (vw & set(c.rd)):
            n = max(n, 2)
        if p.kind == 'trans' and c.kind == 'valu' and (vw & set(c.rd)):
            n = max(n, 1)
        if c.op.startswith('v_permlane') and (vw & set(c.rd)):
            n = max(n, 2)
        if c.op.startswith(('v_readfirstlane', 'v_readlane')) and (vw & set(c.rd)):
            n = max(n, 1)
        if cv and (sw & set(c.rd)):
            n = max(n, 2)
        if c.kind.startswith('vmem') and (sw & set(c.rd)):
            n = max(n, 5)
        if c.kind == 'salu' and (sw & set(c.rd)):
            n = max(n, 1)
    if p.kind == 'salu' and ('m0', 0) in pw and c.kind == 'vmem_lds':
        n = max(n, 1)
    if p.kind == 'vmem_store' and p.crd and (set(p.crd) & set(c.wr)):
        n = max(n, 2)
    return n


class Asm:
    def __init__(self):
        self.ins = []
        self.lgkm = []
        self.vm = []
        self.auto = True

    def _hist_need(self, c):
        dist = 0
        need = 0
        for p in reversed(self.ins):
            if dist >= 20:
                break
            if p.kind == 'label':
                continue
            r = need_states(p, c)
            if r > dist:
                need = max(need, r - dist)
            dist += p.states
        return need

    def _apply_wait(self, i):
        if 'lgkmcnt' in i.cnt:
            n = i.cnt['lgkmcnt']
            if any(x.kind == 'smem' for x in self.lgkm):
                if n == 0:
                    self.lgkm = []
            else:
                while len(self.lgkm) > n:
                    self.lgkm.pop(0)
        if 'vmcnt' in i.cnt:
            n = i.cnt['vmcnt']
            while len(self.vm) > n:
                self.vm.pop(0)

    def raw(self, text):
        i = Ins(text)
        self.ins.append(i)
        if i.kind == 'wait':
            self._apply_wait(i)
        elif i.kind in ('ds_read', 'ds_write', 'smem'):
            self.lgkm.append(i)
            assert len(self.lgkm) <= 15, 'too many lgkm ops outstanding'
        elif i.kind.startswith('vmem'):
            self.vm.append(i)
            assert len(self.vm) <= 63, 'too many vm ops outstanding'
        return i

    def __call__(self, text):
        for line in text.strip().split('\n'):
            line = line.strip()
            if line:
                self.emit(line)

    def emit(self, text):
        c = Ins(text)
        if c.kind == 'label':
            self.ins.append(c)
            return
        touched = set(c.rd) | set(c.wr)
        last = -1
        for k, p in enumerate(self.lgkm):
            if set(p.wr) & touched:
                last = k
        wl = None
        if last >= 0:
            if any(x.kind == 'smem' for x in self.lgkm):
                wl = 0
            else:
                wl = len(self.lgkm) - 1 - last
        last = -1
        for k, p in enumerate(self.vm):
            if set(p.wr) & touched:
                last = k
        wv = None
        if last >= 0:
            wv = len(self.vm) - 1 - last
        if wl is not None or wv is not None:
            s = 's_waitcnt'
            if wv is not None:
                s += ' vmcnt(%d)' % wv
            if wl is not None:
                s += ' lgkmcnt(%d)' % wl
            self.raw(s)
        n = self._hist_need(c)
        while n > 0:
            k = min(n, 16)
            self.raw('s_nop %d' % (k - 1))
            n -= k
        self.raw(text)

    def text(self):
        out = []
        for i in self.ins:
            if i.kind == 'label':
                out.append(i.text)
            else:
                out.append('    ' + i.text)
        return '\n'.join(out)


def verify(seq, name=''):
    lgkm, vm = [], []
    errs = []
    hist = []
    for idx, c in enumerate(seq):
        if c.kind == 'label':
            continue
        touched = set(c.rd) | set(c.wr)
        if c.kind == 'wait':
            if 'lgkmcnt' in c.cnt:
                n = c.cnt['lgkmcnt']
                if any(x.kind == 'smem' for x in lgkm):
                    if n == 0:
                        lgkm = []
                else:
                    while len(lgkm) > n:
                        lgkm.pop(0)
            if 'vmcnt' in c.cnt:
                while len(vm) > c.cnt['vmcnt']:
                    vm.pop(0)
        else:
            for p in lgkm + vm:
                if set(p.wr) & touched:
                    errs.append('%s: missing wait: [%s] -> [%s]' % (name, p.text, c.text))
            dist = 0
            for p in reversed(hist):
                if dist >= 20:
                    break
                r = need_states(p, c)
                if r > dist:
                    errs.append('%s: hazard %d<%d: [%s] -> [%s]' % (name, dist, r, p.text, c.text))
                dist += p.states
        if c.kind in ('ds_read', 'ds_write', 'smem'):
            lgkm.append(c)
            if len(lgkm) > 15:
                errs.append('%s: lgkm overflow at %s' % (name, c.text))
        elif c.kind.startswith('vmem'):
            vm.append(c)
        hist.append(c)
    return errs
```

```python
import sys, os, struct, math
sys.path.insert(0, os.path.dirname(os.path.abspath(__file__)))
from asmlib import Asm, Ins, verify

NAME = 'standalone__gqa_softmax__near_ridge_kernel'

CFG = dict(
    POOL=8,
    PF=4,
    BUD32=24,
    BUD16=10,
    PRIO=0,
    LA=5,
)

S = [0, 16]
NEGM = 32
O = 48
P = 112
SR = 120
PR = 128
E = 132
L, TS, LR, TSR, NEGMR = 136, 137, 138, 139, 140
AK0, AK1, AV, ARK, ARV0, ARV1, ALIN, DK, DV = 141, 142, 143, 144, 145, 146, 147, 148, 149
T0, T1 = 150, 151
NVGPR = 152
AQ = 0
APOOL = 32
AOR = 64
NAGPR = 96

SK, SV, SQ, SO = 4, 8, 12, 16
sW, sLOOP, sC, sTHR, sFLOOR, sTHRR, sFLOORR = 20, 21, 22, 24, 25, 26, 27
sKCUR, sVCUR, sKD, sVD = 28, 29, 30, 31
sRET = 32
sRM = [34, 36]
sRR = 38
sDKL, sDKG, sDVL, sDVG, sDT = 40, 41, 42, 43, 44
sT = 46

SLOT = 16384
VRING, NVS = 0, 4
KRING, NKS = 65536, 5
QREM = KRING + NKS * SLOT
LDS_BYTES = QREM + 4096
CM = 0
CML = 65536
CR = 69632
CRML = CR + 32768

THR = 1024.0


def f32bits(x):
    return struct.unpack('<I', struct.pack('<f', x))[0]


def vr(b, n=1):
    return 'v%d' % b if n == 1 else 'v[%d:%d]' % (b, b + n - 1)


def ar(b, n=1):
    return 'a%d' % b if n == 1 else 'a[%d:%d]' % (b, b + n - 1)


def sr(b, n=1):
    return 's%d' % b if n == 1 else 's[%d:%d]' % (b, b + n - 1)


class Frag:
    def __init__(self, kind, *idx):
        self.kind, self.idx = kind, idx
        self.buf = None
        self.last_use = None
        self.first_use = None
        self.loaded = False

    def reg(self):
        return APOOL + 4 * self.buf

    def loads(self):
        b = self.reg()
        k = self.kind
        if k == 'K':
            s, = self.idx
            return ['ds_read_b128 %s, %s offset:%d' % (ar(b, 4), vr(AK1 if s & 1 else AK0), (s >> 1) * 256)]
        if k == 'V':
            s, dt = self.idx
            return ['ds_read_b64_tr_b16 %s, %s offset:%d' % (ar(b + 2 * u, 2), vr(AV), s * 4096 + u * 2048 + dt * 256)
                    for u in range(2)]
        if k == 'RK':
            kt, ks = self.idx
            return ['ds_read_b128 %s, %s offset:%d' % (ar(b, 4), vr(ARK), kt * 4096 + ks * 256)]
        if k == 'RQ':
            ks, = self.idx
            return ['ds_read_b128 %s, %s offset:%d' % (ar(b, 4), vr(ALIN), ks * 1024)]
        if k == 'RV':
            dt, = self.idx
            return ['ds_read_b64_tr_b16 %s, %s offset:%d' % (ar(b + 2 * u, 2), vr(ARV1 if dt & 1 else ARV0),
                                                            u * 4096 + (dt >> 1) * 256) for u in range(2)]
        raise ValueError(k)


class Anchor:
    def __init__(self, kind, emit, frags=(), bud=0):
        self.kind, self.emit, self.frags, self.bud = kind, emit, list(frags), bud


class Item:
    def __init__(self, lines, lo, hi, cost, prio=0):
        self.lines, self.lo, self.hi, self.cost, self.prio = lines, lo, hi, cost, prio


def cost_of(line):
    if line.startswith('v_exp'):
        return 8
    if line.startswith('buffer_load'):
        return 16
    return 4


def region_anchors(spec):
    par = spec['par']
    Sc, Sn = S[par], S[1 - par]
    A = []
    if spec['rem'] == 'qk':
        for ks in range(4):
            fq = Frag('RQ', ks)
            for kt in range(2):
                fk = Frag('RK', kt, ks)
                d = vr(SR + 4 * kt, 4)
                A.append(Anchor('rqk', (lambda fk=fk, fq=fq, d=d:
                                        'v_mfma_f32_16x16x32_bf16 %s, %s, %s, %s' % (d, ar(fk.reg(), 4), ar(fq.reg(), 4), d)),
                                [fk, fq], CFG['BUD16']))
    if spec['qk']:
        for s in range(8):
            fk = Frag('K', s)
            c = vr(NEGM, 16) if s == 0 else vr(Sn, 16)
            A.append(Anchor('qk', (lambda fk=fk, s=s, c=c:
                                   'v_mfma_f32_32x32x16_bf16 %s, %s, %s, %s' % (vr(Sn, 16), ar(fk.reg(), 4), ar(AQ + 4 * s, 4), c)),
                            [fk], CFG['BUD32']))
    if spec['pv']:
        A.append(Anchor('chk', None))
        for s in range(2):
            for dt in range(4):
                fv = Frag('V', s, dt)
                o = vr(O + 16 * dt, 16)
                A.append(Anchor('pv', (lambda fv=fv, s=s, o=o:
                                       'v_mfma_f32_32x32x16_bf16 %s, %s, %s, %s' % (o, ar(fv.reg(), 4), vr(P + 4 * s, 4), o)),
                                [fv], CFG['BUD32']))
    if spec['rem'] == 'pv':
        for dt in range(8):
            fv = Frag('RV', dt)
            o = ar(AOR + 4 * dt, 4)
            A.append(Anchor('rpv', (lambda fv=fv, o=o:
                                    'v_mfma_f32_16x16x32_bf16 %s, %s, %s, %s' % (o, ar(fv.reg(), 4), vr(PR, 4), o)),
                            [fv], CFG['BUD16']))
    if spec['rem'] == 'qk':
        A.append(Anchor('rchk', None))
    idx = 0
    seen = []
    for ai, a in enumerate(A):
        for f in a.frags:
            if f.buf is None:
                f.buf = idx % CFG['POOL']
                idx += 1
                f.first_use = ai
                seen.append(f)
            f.last_use = ai
    return A, seen


def softmax_lines(Sb, r0, n, ts, pdst, first):
    groups = []
    for k in range(0, n, 2):
        e0 = E + (k % 4)
        e1 = e0 + 1
        g = ['v_exp_f32 %s, %s' % (vr(e0), vr(Sb + r0 + k)),
             'v_exp_f32 %s, %s' % (vr(e1), vr(Sb + r0 + k + 1))]
        if first and k == 0:
            a = ['v_add_f32 %s, %s, %s' % (vr(ts), vr(e0), vr(e1))]
        else:
            a = ['v_add_f32 %s, %s, %s' % (vr(ts), vr(ts), vr(e0)),
                 'v_add_f32 %s, %s, %s' % (vr(ts), vr(ts), vr(e1))]
        c = ['v_cvt_pk_bf16_f32 %s, %s, %s' % (vr(pdst + (r0 + k) // 2), vr(e0), vr(e1))]
        groups.append((g, a, c))
    return groups


class Kernel:
    def __init__(self):
        self.a = Asm()
        self.stubs = []
        self.uid = 0

    def label(self, base):
        self.uid += 1
        return 'L_%s_%d' % (base, self.uid)

    def ring_adv(self, cur, delta, base, n):
        return ['s_add_u32 %s, %s, 0x%x' % (sr(sT), sr(cur), SLOT),
                's_cmp_eq_u32 %s, 0x%x' % (sr(sT), n * SLOT),
                's_cselect_b32 %s, 0, %s' % (sr(sT), sr(sT)),
                's_sub_u32 %s, %s, %s' % (sr(delta), sr(sT), sr(cur)),
                's_mov_b32 %s, %s' % (sr(cur), sr(sT))]

    def region(self, role, spec, nxt_spec, prefetched, vmwait, dma, barrier=True):
        a = self.a
        A, frags = region_anchors(spec)
        par = spec['par']
        Sc, Sn = S[par], S[1 - par]
        nA = len(A)
        G1 = role != 0
        free = {}
        streams = {}

        def add(stream, it):
            streams.setdefault(stream, []).append(it)

        kstream = []
        vstream = []
        for i, f in enumerate(frags):
            lo = free.get(f.buf, -1)
            free[f.buf] = f.last_use
            if i < prefetched:
                continue
            lo = max(lo, f.first_use - CFG['LA'])
            it = Item(f.loads(), lo, max(lo, f.first_use - 1), 4 * len(f.loads()), prio=-10)
            if f.kind in ('K', 'RK', 'RQ'):
                add('K', it)
            else:
                add('V', it)
        npf = 0
        if nxt_spec is not None:
            adv = self.ring_adv(sKCUR, sKD, KRING, NKS)
            adv += ['v_add_u32 %s, %s, %s' % (vr(r), sr(sKD), vr(r)) for r in ([AK0, AK1] + ([ARK] if G1 else []))]
            add('K', Item(adv, -1, nA - 1, 4 * len(adv), prio=-5))
            NA, nfrags = region_anchors(nxt_spec)
            for f in nfrags[:CFG['PF']]:
                if f.kind not in ('K', 'RK', 'RQ'):
                    break
                lo = max(free.get(f.buf, -1), nA + f.first_use - CFG['LA'])
                lo = min(lo, nA - 1)
                add('K', Item(f.loads(), lo, nA - 1, 4 * len(f.loads()), prio=-5))
                npf += 1
        if spec['pv']:
            adv = self.ring_adv(sVCUR, sVD, VRING, NVS)
            adv += ['v_add_u32 %s, %s, %s' % (vr(r), sr(sVD), vr(r)) for r in ([AV] + ([ARV0, ARV1] if G1 else []))]
            add('V', Item(adv, -1, nA - 1, 4 * len(adv), prio=5))
        kinds = [x.kind for x in A]
        if spec['pv']:
            ci = kinds.index('chk')
            for g, ad, c in softmax_lines(Sc, 8, 8, TS, P, False):
                for ln in g + ad + c:
                    add('SM', Item([ln], -1, ci - 1, cost_of(ln)))
        if spec['qk']:
            lq = max(i for i, k in enumerate(kinds) if k == 'qk')
            lo = lq + 2 if spec['pv'] else lq
            lo = min(lo, nA - 1)
            pv3 = None
            if spec['pv']:
                pv3 = [i for i, k in enumerate(kinds) if k == 'pv'][3]
            for g, ad, c in softmax_lines(Sn, 0, 8, TS, P, True):
                for ln in g + ad:
                    add('SM', Item([ln], lo, nA - 1, cost_of(ln)))
                for ln in c:
                    add('SM', Item([ln], max(lo, pv3) if pv3 is not None else lo, nA - 1, cost_of(ln)))
        if spec['rem'] == 'qk':
            init = ['v_mov_b32 %s, %s' % (vr(SR + i), vr(NEGMR)) for i in range(8)]
            add('RI', Item(init, -1, -1, 32, prio=-20))
            lr = max(i for i, k in enumerate(kinds) if k == 'rqk')
            rc = kinds.index('rchk')
            for k in range(0, 8, 2):
                lines = ['v_exp_f32 %s, %s' % (vr(T0), vr(SR + k)),
                         'v_exp_f32 %s, %s' % (vr(T1), vr(SR + k + 1))]
                if k == 0:
                    lines += ['v_add_f32 %s, %s, %s' % (vr(TSR), vr(T0), vr(T1))]
                else:
                    lines += ['v_add_f32 %s, %s, %s' % (vr(TSR), vr(TSR), vr(T0)),
                              'v_add_f32 %s, %s, %s' % (vr(TSR), vr(TSR), vr(T1))]
                lines += ['v_cvt_pk_bf16_f32 %s, %s, %s' % (vr(PR + k // 2), vr(T0), vr(T1))]
                for ln in lines:
                    add('RS', Item([ln], min(lr + 2, rc - 1), rc - 1, cost_of(ln), prio=1))
        if dma:
            for which in 'KV':
                l, g, srd, vo = (sDKL, sDKG, SK, DK) if which == 'K' else (sDVL, sDVG, SV, DV)
                for jj in range(4):
                    lines = ['s_add_u32 m0, %s, 0x%x' % (sr(l), jj * 4096),
                             's_add_u32 %s, %s, 0x%x' % (sr(sDT), sr(g), jj * 4096),
                             'buffer_load_dwordx4 %s, %s, %s offen lds' % (vr(vo), sr(srd, 4), sr(sDT))]
                    add('D', Item(lines, -1, nA - 1, 24, prio=2))
                base, n = (KRING, NKS) if which == 'K' else (VRING, NVS)
                lines = ['s_add_u32 %s, %s, 0x%x' % (sr(g), sr(g), SLOT),
                         's_add_u32 %s, %s, 0x%x' % (sr(l), sr(l), SLOT),
                         's_cmp_ge_u32 %s, 0x%x' % (sr(l), base + n * SLOT),
                         's_cselect_b32 %s, 0x%x, 0' % (sr(sDT), n * SLOT),
                         's_sub_u32 %s, %s, %s' % (sr(l), sr(l), sr(sDT))]
                add('D', Item(lines, -1, nA - 1, 20, prio=2))
        for st in streams.values():
            h = 10 ** 9
            for it in reversed(st):
                it.hi = min(it.hi, h)
                h = it.hi
            l = -1
            for it in st:
                it.lo = max(it.lo, l)
                l = it.lo
                assert it.lo <= it.hi or True

        def fill(gap, bud):
            used = 0
            while True:
                cands = [(st[0].hi, st[0].prio, name) for name, st in streams.items() if st and st[0].lo <= gap]
                if not cands:
                    break
                forced = [c for c in cands if c[0] <= gap]
                if forced:
                    pick = min(forced, key=lambda c: (c[1], c[0]))
                elif used < bud:
                    pick = min(cands, key=lambda c: (c[1] if c[1] < 0 else 0, c[0], c[1]))
                else:
                    break
                it = streams[pick[2]].pop(0)
                for ln in it.lines:
                    a.emit(ln)
                used += it.cost

        fill(-1, 0)
        for i, an in enumerate(A):
            if an.kind == 'chk':
                lab_call, lab_back = self.label('rc'), self.label('rb')
                a.emit('v_cmp_nge_f32 vcc, %s, %s' % (sr(sTHR), vr(TS)))
                a.emit('s_cbranch_vccnz %s' % lab_call)
                a.emit(lab_back + ':')
                a.emit('v_add_f32 %s, %s, %s' % (vr(L), vr(L), vr(TS)))
                self.stubs.append((lab_call, lab_back, sRM[par]))
            elif an.kind == 'rchk':
                lab_call, lab_back = self.label('rrc'), self.label('rrb')
                a.emit('v_cmp_nge_f32 vcc, %s, %s' % (sr(sTHRR), vr(TSR)))
                a.emit('s_cbranch_vccnz %s' % lab_call)
                a.emit(lab_back + ':')
                a.emit('v_add_f32 %s, %s, %s' % (vr(LR), vr(LR), vr(TSR)))
                self.stubs.append((lab_call, lab_back, sRR))
            else:
                a.emit(an.emit())
            fill(i, an.bud if i < nA - 1 else 10 ** 9)
        for st in streams.values():
            assert not st
        if barrier:
            if vmwait is not None:
                a.emit('s_waitcnt vmcnt(%d)' % vmwait)
            a.emit('s_barrier')
        return npf

    def scale_dword(self, src, dst_line):
        a = self.a
        e0, e1 = E, E + 1
        a.emit('v_lshlrev_b32 %s, 16, %s' % (vr(e0), vr(src)))
        a.emit('v_and_b32 %s, 0xffff0000, %s' % (vr(e1), vr(src)))
        a.emit('v_pk_mul_f32 %s, %s, %s' % (vr(e0, 2), vr(e0, 2), sr(sC, 2)))
        a.emit('v_cvt_pk_bf16_f32 %s, %s, %s' % (vr(src), vr(e0), vr(e1)))
        if dst_line:
            a.emit(dst_line)

    def prologue_common(self):
        a = self.a
        t = sT
        a('''
        s_cmp_ge_u32 s2, 256
        s_cbranch_scc1 L_end
        s_load_dwordx4 s[48:51], s[0:1], 0
        s_load_dwordx4 s[52:55], s[0:1], 16
        v_lshrrev_b32 v1, 6, v0
        v_and_b32 v0, 63, v0
        v_readfirstlane_b32 s20, v1
        s_and_b32 s56, s2, 7
        s_lshr_b32 s57, s2, 3
        s_lshr_b32 s58, s57, 2
        s_lshl_b32 s56, s56, 3
        s_add_u32 s56, s56, s58
        s_and_b32 s57, s57, 3
        s_lshl_b32 s58, s56, 2
        s_add_u32 s57, s57, s58
        s_lshl_b32 s56, s56, 18
        s_mul_i32 s57, s57, 36864
        ''')
        a('s_waitcnt lgkmcnt(0)')
        for srd, lo, off, size in ((SQ, 48, 57, 36864), (SK, 50, 56, 262144), (SV, 52, 56, 262144), (SO, 54, 57, 36864)):
            a('''
            s_add_u32 s%d, s%d, s%d
            s_addc_u32 s%d, s%d, 0
            s_and_b32 s%d, s%d, 0xffff
            s_mov_b32 s%d, %d
            s_mov_b32 s%d, 0x20000
            ''' % (srd, lo, off, srd + 1, lo + 1, srd + 1, srd + 1, srd + 2, size, srd + 3))
        a('''
        s_and_b32 s58, s20, 3
        s_lshr_b32 s59, s20, 2
        ''')
        a('''
        v_and_b32 v2, 31, v0
        s_lshl_b32 s46, s58, 5
        v_add_u32 v2, s46, v2
        v_lshlrev_b32 v2, 8, v2
        v_lshrrev_b32 v3, 5, v0
        v_lshl_or_b32 v2, v3, 4, v2
        ''')
        for s in range(8):
            a('buffer_load_dwordx4 %s, v2, %s, 0 offen offset:%d' % (vr(O + 4 * s, 4), sr(SQ, 4), s * 32))
        a('''
        v_bfe_u32 v4, v0, 2, 2
        v_and_b32 v5, 3, v0
        v_lshrrev_b32 v6, 4, v0
        v_and_b32 v7, 15, v0
        v_lshlrev_b32 %s, 4, v0
        ''' % vr(ALIN))
        a('''
        s_lshl_b32 s46, s58, 10
        v_xor_b32 v8, s58, v5
        v_lshl_or_b32 v8, v6, 2, v8
        v_lshlrev_b32 v8, 4, v8
        v_lshl_or_b32 v8, v4, 8, v8
        v_add_u32 %s, s46, v8
        s_and_b32 s47, s58, 1
        s_lshl_b32 s47, s47, 1
        v_xor_b32 v8, s47, v5
        v_lshl_or_b32 v8, v6, 2, v8
        v_lshlrev_b32 v8, 4, v8
        v_lshl_or_b32 v8, v4, 8, v8
        v_add_u32 %s, s46, v8
        ''' % (vr(DK), vr(DV)))

    def dma_tile(self, which, tile, slot):
        a = self.a
        srd, vo, base = (SK, DK, KRING) if which == 'K' else (SV, DV, VRING)
        for jj in range(4):
            a('s_add_u32 m0, s46, 0x%x' % (base + slot * SLOT + jj * 4096))
            a('s_mov_b32 %s, 0x%x' % (sr(sDT), tile * SLOT + jj * 4096))
            a('buffer_load_dwordx4 %s, %s, %s offen lds' % (vr(vo), sr(srd, 4), sr(sDT)))

    def prologue_addr(self, role):
        a = self.a
        a('''
        v_bfe_u32 v8, v0, 2, 3
        s_lshl_b32 s47, s59, 3
        v_add_u32 v8, s47, v8
        v_lshlrev_b32 v8, 10, v8
        v_lshl_or_b32 v8, v5, 6, v8
        v_xor_b32 v9, v3, v4
        v_lshl_or_b32 v8, v9, 4, v8
        v_add_u32 %s, 0x%x, v8
        v_xor_b32 %s, 32, %s
        ''' % (vr(AK0), KRING, vr(AK1), vr(AK0)))
        a('''
        v_add_u32 v8, s47, v3
        v_lshlrev_b32 v8, 10, v8
        v_lshl_or_b32 v8, v4, 6, v8
        v_and_b32 v9, 1, v6
        v_xor_b32 v9, v9, v3
        v_lshl_or_b32 v8, v9, 5, v8
        v_lshl_or_b32 v8, v5, 3, v8
        v_add_u32 %s, 0x%x, v8
        ''' % (vr(AV), VRING))
        if role != 0:
            a('''
            s_and_b32 s47, s20, 1
            s_lshl_b32 s47, s47, 3
            v_add_u32 v8, s47, v4
            v_lshlrev_b32 v8, 10, v8
            v_lshl_or_b32 v8, v5, 6, v8
            v_xor_b32 v9, v6, v4
            v_lshl_or_b32 v8, v9, 4, v8
            v_add_u32 %s, 0x%x, v8
            ''' % (vr(ARK), KRING))
            a('''
            v_add_u32 v8, s47, v6
            v_lshlrev_b32 v8, 10, v8
            v_lshl_or_b32 v8, v4, 6, v8
            v_and_b32 v9, 1, v6
            v_lshl_or_b32 v8, v9, 5, v8
            v_lshl_or_b32 v8, v5, 3, v8
            v_add_u32 %s, 0x%x, v8
            v_xor_b32 %s, 32, %s
            ''' % (vr(ARV0), VRING, vr(ARV1), vr(ARV0)))

    def init_state(self, role):
        a = self.a
        c = (128 ** -0.5) * math.log2(math.e)
        a('''
        s_mov_b32 %s, 0x%x
        s_mov_b32 %s, 0x%x
        s_mov_b32 %s, -1.0
        s_mov_b32 %s, -1.0
        s_mov_b32 %s, 0xff800000
        s_mov_b32 %s, 0xff800000
        s_mov_b32 %s, 0
        s_mov_b32 %s, 0
        s_mov_b32 %s, 7
        ''' % (sr(sC), f32bits(c), sr(sC + 1), f32bits(c), sr(sTHR), sr(sTHRR), sr(sFLOOR), sr(sFLOORR),
               sr(sKCUR), sr(sVCUR), sr(sLOOP)))
        lab = self.label('pc')
        a('s_getpc_b64 %s' % sr(sRR, 2))
        a(lab + ':')
        for dst, tgt in ((sRM[0], 'L_rare_m0'), (sRM[1], 'L_rare_m1'), (sRR, 'L_rare_r')):
            a.raw('s_add_u32 %s, %s, %s-%s' % (sr(dst), sr(sRR), tgt, lab))
            a.raw('s_addc_u32 %s, %s, 0' % (sr(dst + 1), sr(sRR + 1)))

    def q_process(self, s):
        a = self.a
        for j in range(4):
            r = O + 4 * s + j
            self.scale_dword(r, 'v_accvgpr_write_b32 %s, %s' % (ar(AQ + 4 * s + j), vr(r)))

    def zero_state(self, role):
        a = self.a
        for i in range(64):
            a('v_mov_b32 %s, 0' % vr(O + i))
        for i in range(16):
            a('v_mov_b32 %s, 0' % vr(NEGM + i))
        for r in (L, LR, NEGMR):
            a('v_mov_b32 %s, 0' % vr(r))
        if role != 0:
            for i in range(32):
                a('v_accvgpr_write_b32 %s, 0' % ar(AOR + i))

    def spec(self, role, t):
        sp = dict(par=t & 1, qk=(t < 15), pv=(t >= 0), rem=None)
        if role == 1:
            sp['rem'] = 'qk' if (t & 1) else 'pv'
        elif role == 2:
            sp['rem'] = 'pv' if (t & 1) else 'qk'
        if sp['rem'] == 'qk' and t + 1 > 15:
            sp['rem'] = None
        if sp['rem'] == 'pv' and t < 0:
            sp['rem'] = None
        return sp

    def role_path(self, role):
        a = self.a
        marks = {}
        a('L_role%d:' % role)
        marks['start'] = len(a.ins)
        if role == 0:
            a('s_lshl_b32 s46, s58, 10')
            self.dma_tile('K', 0, 0)
            self.dma_tile('K', 1, 1)
            self.prologue_addr(role)
            self.init_state(role)
            order = [('K', 2), ('V', 0), ('K', 3), ('V', 1), ('K', 4), ('V', 2)]
            for s in range(8):
                if s < len(order):
                    self.dma_tile(order[s][0], order[s][1], order[s][1])
                self.q_process(s)
            a('''
            s_add_u32 %s, s46, 0x%x
            s_mov_b32 %s, 0x%x
            s_add_u32 %s, s46, 0x%x
            s_mov_b32 %s, 0x%x
            ''' % (sr(sDKL), KRING, sr(sDKG), 5 * SLOT, sr(sDVL), VRING + 3 * SLOT, sr(sDVG), 3 * SLOT))
            self.zero_state(role)
            a('s_waitcnt vmcnt(24)')
        else:
            a('''
            s_lshl_b32 s46, s58, 2
            v_add_u32 v8, s46, v6
            v_lshlrev_b32 v8, 4, v8
            v_add_u32 v9, 128, v7
            v_lshl_or_b32 v8, v9, 8, v8
            buffer_load_dwordx4 %s, v8, %s, 0 offen
            ''' % (vr(O + 32, 4), sr(SQ, 4)))
            self.prologue_addr(role)
            self.init_state(role)
            for s in range(8):
                self.q_process(s)
            for j in range(4):
                self.scale_dword(O + 32 + j, None)
            a('''
            s_lshl_b32 s46, s58, 10
            s_add_u32 s46, s46, 0x%x
            v_add_u32 v8, s46, %s
            ds_write_b128 v8, %s
            ''' % (QREM, vr(ALIN), vr(O + 32, 4)))
            a('v_add_u32 %s, 0x%x, %s' % (vr(ALIN), QREM, vr(ALIN)))
            self.zero_state(role)
            a('s_waitcnt lgkmcnt(0)')
        if CFG['PRIO'] and role != 0:
            a('s_setprio %d' % CFG['PRIO'])
        a('s_barrier')
        g0 = role == 0
        sp = lambda t: self.spec(role, t)
        pf = self.region(role, sp(-1), sp(0), 0, 16 if g0 else None, False)
        marks['loop'] = len(a.ins)
        lab = 'L_loop%d' % role
        a(lab + ':')
        pf1 = self.region(role, sp(0), sp(1), pf, 16 if g0 else None, g0)
        pf2 = self.region(role, sp(1), sp(2), pf1, 16 if g0 else None, g0)
        assert pf2 == pf
        a('s_sub_u32 %s, %s, 1' % (sr(sLOOP), sr(sLOOP)))
        a('s_cmp_lg_u32 %s, 0' % sr(sLOOP))
        a('s_cbranch_scc1 %s' % lab)
        marks['loop_end'] = len(a.ins)
        pf3 = self.region(role, sp(14), sp(15), pf2, 8 if g0 else None, False)
        self.region(role, sp(15), None, pf3, 0 if g0 else None, False)
        if role == 0:
            self.final_g0()
        else:
            self.final_g1()
        a('s_endpgm')
        marks['end'] = len(a.ins)
        return marks

    def final_g1(self):
        a = self.a
        a('v_subrev_u32 %s, 0x%x, %s' % (vr(ALIN), QREM, vr(ALIN)))
        a('s_lshl_b32 s46, s58, 14')
        a('v_add_u32 %s, s46, %s' % (vr(T0), vr(ALIN)))
        for j in range(16):
            a('ds_write_b128 %s, %s offset:%d' % (vr(T0), vr(O + 4 * j, 4), CM + j * 1024))
            if len(a.lgkm) >= 12:
                a('s_waitcnt lgkmcnt(4)')
        a('v_mov_b32 %s, %s' % (vr(E), vr(NEGM)))
        a('v_mov_b32 %s, %s' % (vr(E + 1), vr(L)))
        a('v_lshrrev_b32 %s, 1, %s' % (vr(T1), vr(ALIN)))
        a('s_lshl_b32 s46, s58, 9')
        a('s_add_u32 s46, s46, 0x%x' % CML)
        a('v_add_u32 %s, s46, %s' % (vr(T0), vr(T1)))
        a('ds_write_b64 %s, %s' % (vr(T0), vr(E, 2)))
        a('v_mov_b32 %s, %s' % (vr(E + 2), vr(NEGMR)))
        a('v_mov_b32 %s, %s' % (vr(E + 3), vr(LR)))
        a('ds_write_b64 %s, %s offset:%d' % (vr(T0), vr(E + 2, 2), CRML - CML))
        a('s_waitcnt lgkmcnt(4)')
        a('s_lshl_b32 s46, s58, 13')
        a('s_add_u32 s46, s46, 0x%x' % CR)
        a('v_add_u32 %s, s46, %s' % (vr(T0), vr(ALIN)))
        for j in range(8):
            a('ds_write_b128 %s, %s offset:%d' % (vr(T0), ar(AOR + 4 * j, 4), j * 1024))
        a('s_waitcnt lgkmcnt(0)')
        a('s_barrier')
        ML = 0
        OJ = 16
        a('v_add_u32 %s, 0x%x, %s' % (vr(T1), CRML, vr(T1)))
        for j in range(4):
            a('ds_read_b64 %s, %s offset:%d' % (vr(ML + 2 * j, 2), vr(T1), j * 512))
        a('s_lshl_b32 s46, s58, 11')
        a('s_add_u32 s46, s46, 0x%x' % CR)
        a('v_add_u32 %s, s46, %s' % (vr(T0), vr(ALIN)))
        for j in range(4):
            for d in range(2):
                a('ds_read_b128 %s, %s offset:%d' % (vr(OJ + 8 * j + 4 * d, 4), vr(T0), j * 8192 + d * 1024))
        nm, F, Ls, tmp = 8, 9, 13, 14
        a('v_min_f32 %s, %s, %s' % (vr(nm), vr(ML), vr(ML + 2)))
        a('v_min3_f32 %s, %s, %s, %s' % (vr(nm), vr(nm), vr(ML + 4), vr(ML + 6)))
        for j in range(4):
            a('v_sub_f32 %s, %s, %s' % (vr(F + j), vr(nm), vr(ML + 2 * j)))
        for j in range(4):
            a('v_exp_f32 %s, %s' % (vr(F + j), vr(F + j)))
        a('v_mul_f32 %s, %s, %s' % (vr(Ls), vr(F), vr(ML + 1)))
        for j in range(1, 4):
            a('v_fmac_f32 %s, %s, %s' % (vr(Ls), vr(F + j), vr(ML + 2 * j + 1)))
        a('v_mov_b32 %s, %s' % (vr(tmp), vr(Ls)))
        a('v_permlane32_swap_b32 %s, %s' % (vr(Ls), vr(tmp)))
        a('v_add_f32 %s, %s, %s' % (vr(Ls), vr(Ls), vr(tmp)))
        a('v_mov_b32 %s, %s' % (vr(tmp), vr(Ls)))
        a('v_permlane16_swap_b32 %s, %s' % (vr(Ls), vr(tmp)))
        a('v_add_f32 %s, %s, %s' % (vr(Ls), vr(Ls), vr(tmp)))
        a('v_rcp_f32 %s, %s' % (vr(Ls), vr(Ls)))
        for j in range(4):
            a('v_mul_f32 %s, %s, %s' % (vr(F + j), vr(F + j), vr(Ls)))
        for r in range(8):
            a('v_mul_f32 %s, %s, %s' % (vr(OJ + r), vr(OJ + r), vr(F)))
        for j in range(1, 4):
            for r in range(8):
                a('v_fmac_f32 %s, %s, %s' % (vr(OJ + r), vr(OJ + 8 * j + r), vr(F + j)))
        for k in range(4):
            a('v_cvt_pk_bf16_f32 %s, %s, %s' % (vr(48 + k), vr(OJ + 2 * k), vr(OJ + 2 * k + 1)))
        a('''
        v_lshrrev_b32 v60, 4, %s
        v_and_b32 v61, 15, v60
        v_lshrrev_b32 v60, 4, v60
        v_add_u32 v61, 128, v61
        v_lshlrev_b32 v61, 8, v61
        v_lshl_or_b32 v61, v60, 3, v61
        s_lshl_b32 s46, s58, 6
        v_add_u32 v61, s46, v61
        buffer_store_dwordx2 v[48:49], v61, %s, 0 offen
        buffer_store_dwordx2 v[50:51], v61, %s, 0 offen offset:32
        ''' % (vr(ALIN), sr(SO, 4), sr(SO, 4)))

    def final_g0(self):
        a = self.a
        a('s_barrier')
        a('v_lshrrev_b32 %s, 1, %s' % (vr(T1), vr(ALIN)))
        a('s_lshl_b32 s46, s58, 9')
        a('s_add_u32 s46, s46, 0x%x' % CML)
        a('v_add_u32 %s, s46, %s' % (vr(T1), vr(T1)))
        a('ds_read_b64 %s, %s' % (vr(E, 2), vr(T1)))
        a('s_lshl_b32 s46, s58, 14')
        a('v_add_u32 %s, s46, %s' % (vr(ARK), vr(ALIN)))
        def rd(dt):
            b = S[dt & 1]
            for j in range(4):
                a('ds_read_b128 %s, %s offset:%d' % (vr(b + 4 * j, 4), vr(ARK), CM + (4 * dt + j) * 1024))
        rd(0)
        rd(1)
        nm, f0, f1, Ls, tmp = SR, T0, E + 2, SR + 1, SR + 2
        a('v_min_f32 %s, %s, %s' % (vr(nm), vr(NEGM), vr(E)))
        a('v_sub_f32 %s, %s, %s' % (vr(f0), vr(nm), vr(NEGM)))
        a('v_sub_f32 %s, %s, %s' % (vr(f1), vr(nm), vr(E)))
        a('v_exp_f32 %s, %s' % (vr(f0), vr(f0)))
        a('v_exp_f32 %s, %s' % (vr(f1), vr(f1)))
        a('v_mul_f32 %s, %s, %s' % (vr(Ls), vr(f0), vr(L)))
        a('v_fmac_f32 %s, %s, %s' % (vr(Ls), vr(f1), vr(E + 1)))
        a('v_mov_b32 %s, %s' % (vr(tmp), vr(Ls)))
        a('v_permlane32_swap_b32 %s, %s' % (vr(Ls), vr(tmp)))
        a('v_add_f32 %s, %s, %s' % (vr(Ls), vr(Ls), vr(tmp)))
        a('v_rcp_f32 %s, %s' % (vr(Ls), vr(Ls)))
        a('v_mul_f32 %s, %s, %s' % (vr(f0), vr(f0), vr(Ls)))
        a('v_mul_f32 %s, %s, %s' % (vr(f1), vr(f1), vr(Ls)))
        ad = SR + 3
        a('''
        v_lshrrev_b32 %s, 4, %s
        v_and_b32 %s, 31, %s
        v_lshrrev_b32 %s, 5, %s
        s_lshl_b32 s46, s58, 5
        v_add_u32 %s, s46, %s
        v_lshlrev_b32 %s, 8, %s
        v_lshl_or_b32 %s, %s, 4, %s
        ''' % (vr(tmp), vr(ALIN), vr(ad), vr(tmp), vr(tmp), vr(tmp), vr(ad), vr(ad), vr(ad), vr(ad),
               vr(ad), vr(tmp), vr(ad)))
        for dt in range(4):
            b = S[dt & 1]
            o = O + 16 * dt
            for k in range(8):
                a('v_pk_mul_f32 %s, %s, %s op_sel_hi:[1,0]' % (vr(o + 2 * k, 2), vr(o + 2 * k, 2), vr(f0, 2)))
            for k in range(8):
                a('v_pk_fma_f32 %s, %s, %s, %s op_sel_hi:[1,0,1]' % (vr(o + 2 * k, 2), vr(b + 2 * k, 2), vr(f1, 2),
                                                                    vr(o + 2 * k, 2)))
            if dt + 2 < 4:
                rd(dt + 2)
            pk = NEGM + 8 * (dt & 1)
            for k in range(8):
                a('v_cvt_pk_bf16_f32 %s, %s, %s' % (vr(pk + k), vr(o + 2 * k), vr(o + 2 * k + 1)))
            for kk in range(2):
                A0 = pk + 4 * kk
                a('v_permlane32_swap_b32 %s, %s' % (vr(A0), vr(A0 + 2)))
                a('v_permlane32_swap_b32 %s, %s' % (vr(A0 + 1), vr(A0 + 3)))
                a('buffer_store_dwordx4 %s, %s, %s, 0 offen offset:%d' % (vr(A0, 4), vr(ad), sr(SO, 4),
                                                                          (dt * 32 + 16 * kk) * 2))

    def rare_main(self, par):
        a = self.a
        Sc, Sn = S[par], S[1 - par]
        a('L_rare_m%d:' % par)
        a.raw('s_nop 15')
        a.raw('s_nop 7')
        save_l, save_v = a.lgkm, a.vm
        a.lgkm, a.vm = [], []
        e0, e1 = E, E + 1
        d, al = E + 2, E + 3
        a('v_max3_f32 %s, %s, %s, %s' % (vr(d), vr(Sc), vr(Sc + 1), vr(Sc + 2)))
        for i in range(3, 15, 2):
            a('v_max3_f32 %s, %s, %s, %s' % (vr(d), vr(d), vr(Sc + i), vr(Sc + i + 1)))
        a('v_max_f32 %s, %s, %s' % (vr(d), vr(d), vr(Sc + 15)))
        a('v_mov_b32 %s, %s' % (vr(al), vr(d)))
        a('v_permlane32_swap_b32 %s, %s' % (vr(d), vr(al)))
        a('v_max_f32 %s, %s, %s' % (vr(d), vr(d), vr(al)))
        a('v_max_f32 %s, %s, %s' % (vr(d), sr(sFLOOR), vr(d)))
        a('v_max_f32 %s, 0, %s' % (vr(e0), vr(d)))
        a('v_exp_f32 %s, -%s' % (vr(e0), vr(e0)))
        for i in range(16):
            a('v_sub_f32 %s, %s, %s' % (vr(NEGM + i), vr(NEGM + i), vr(d)))
        for i in range(16):
            a('v_sub_f32 %s, %s, %s' % (vr(Sc + i), vr(Sc + i), vr(d)))
        for i in range(16):
            a('v_sub_f32 %s, %s, %s' % (vr(Sn + i), vr(Sn + i), vr(d)))
        a('v_mul_f32 %s, %s, %s' % (vr(L), vr(L), vr(e0)))
        skip = 'L_rare_m%d_skip' % par
        a('s_cmp_lg_u32 %s, 0' % sr(sFLOOR))
        a('s_cbranch_scc1 %s' % skip)
        for k in range(32):
            a('v_pk_mul_f32 %s, %s, %s op_sel_hi:[1,0]' % (vr(O + 2 * k, 2), vr(O + 2 * k, 2), vr(e0, 2)))
        a(skip + ':')
        first = True
        for g, ad, c in softmax_lines(Sc, 0, 16, TS, P, True):
            for ln in g + ad + c:
                a(ln)
        a('s_mov_b32 %s, 0' % sr(sFLOOR))
        a('s_mov_b32 %s, 0x%x' % (sr(sTHR), f32bits(THR)))
        a.raw('s_nop 3')
        a('s_setpc_b64 %s' % sr(sRET, 2))
        a.lgkm, a.vm = save_l, save_v

    def rare_rem(self):
        a = self.a
        a('L_rare_r:')
        a.raw('s_nop 15')
        a.raw('s_nop 7')
        save_l, save_v = a.lgkm, a.vm
        a.lgkm, a.vm = [], []
        d, al = T0, T1
        a('v_max3_f32 %s, %s, %s, %s' % (vr(d), vr(SR), vr(SR + 1), vr(SR + 2)))
        a('v_max3_f32 %s, %s, %s, %s' % (vr(d), vr(d), vr(SR + 3), vr(SR + 4)))
        a('v_max3_f32 %s, %s, %s, %s' % (vr(d), vr(d), vr(SR + 5), vr(SR + 6)))
        a('v_max_f32 %s, %s, %s' % (vr(d), vr(d), vr(SR + 7)))
        a('v_mov_b32 %s, %s' % (vr(al), vr(d)))
        a('v_permlane32_swap_b32 %s, %s' % (vr(d), vr(al)))
        a('v_max_f32 %s, %s, %s' % (vr(d), vr(d), vr(al)))
        a('v_mov_b32 %s, %s' % (vr(al), vr(d)))
        a('v_permlane16_swap_b32 %s, %s' % (vr(d), vr(al)))
        a('v_max_f32 %s, %s, %s' % (vr(d), vr(d), vr(al)))
        a('v_max_f32 %s, %s, %s' % (vr(d), sr(sFLOORR), vr(d)))
        a('v_max_f32 %s, 0, %s' % (vr(al), vr(d)))
        a('v_exp_f32 %s, -%s' % (vr(al), vr(al)))
        a('v_sub_f32 %s, %s, %s' % (vr(NEGMR), vr(NEGMR), vr(d)))
        for i in range(8):
            a('v_sub_f32 %s, %s, %s' % (vr(SR + i), vr(SR + i), vr(d)))
        a('v_mul_f32 %s, %s, %s' % (vr(LR), vr(LR), vr(al)))
        a('s_cmp_lg_u32 %s, 0' % sr(sFLOORR))
        a('s_cbranch_scc1 L_rare_r_skip')
        for i in range(32):
            a('v_accvgpr_read_b32 %s, %s' % (vr(d), ar(AOR + i)))
            a('v_mul_f32 %s, %s, %s' % (vr(d), vr(d), vr(al)))
            a('v_accvgpr_write_b32 %s, %s' % (ar(AOR + i), vr(d)))
        a('L_rare_r_skip:')
        for k in range(0, 8, 2):
            a('v_exp_f32 %s, %s' % (vr(T0), vr(SR + k)))
            a('v_exp_f32 %s, %s' % (vr(T1), vr(SR + k + 1)))
            if k == 0:
                a('v_add_f32 %s, %s, %s' % (vr(TSR), vr(T0), vr(T1)))
            else:
                a('v_add_f32 %s, %s, %s' % (vr(TSR), vr(TSR), vr(T0)))
                a('v_add_f32 %s, %s, %s' % (vr(TSR), vr(TSR), vr(T1)))
            a('v_cvt_pk_bf16_f32 %s, %s, %s' % (vr(PR + k // 2), vr(T0), vr(T1)))
        a('s_mov_b32 %s, 0' % sr(sFLOORR))
        a('s_mov_b32 %s, 0x%x' % (sr(sTHRR), f32bits(THR)))
        a.raw('s_nop 3')
        a('s_setpc_b64 %s' % sr(sRET, 2))
        a.lgkm, a.vm = save_l, save_v

    def build(self):
        a = self.a
        self.prologue_common()
        n_common = len(a.ins)
        a('s_cmp_eq_u32 s59, 0')
        a('s_cbranch_scc1 L_role0')
        a('s_cmp_lt_u32 s20, 6')
        a('s_cbranch_scc1 L_role1')
        a('s_branch L_role2')
        common_state = (list(a.lgkm), list(a.vm))
        errs = []
        for role in (0, 1, 2):
            a.lgkm, a.vm = list(common_state[0]), list(common_state[1])
            a.raw('s_nop 0')
            m = self.role_path(role)
            ins = a.ins
            seq = (ins[:n_common] + ins[m['start']:m['loop_end']] + ins[m['loop']:m['loop_end']]
                   + ins[m['loop_end']:m['end']])
            errs += verify(seq, 'role%d' % role)
        a.lgkm, a.vm = [], []
        for call, back, tgt in self.stubs:
            a.raw(call + ':')
            a.raw('s_swappc_b64 %s, %s' % (sr(sRET, 2), sr(tgt, 2)))
            a.raw('s_branch %s' % back)
        self.rare_main(0)
        self.rare_main(1)
        self.rare_rem()
        a.raw('L_end:')
        a.raw('s_endpgm')
        if errs:
            print('\n'.join(errs[:40]), file=sys.stderr)
            raise SystemExit('verify failed: %d errors' % len(errs))
        return a.text()


HEADER = '''; GQA attention forward, B=8 Hq=32 Hkv=8 Sq=144 Sk=1024 D=128 (bf16), generated by dev/gen.py
; @launch grid=(256,1,1) block=(512,1,1) lds=%d
.amdgcn_target "amdgcn-amd-amdhsa--gfx950"
.text
.globl %s
.p2align 8
.type %s,@function
%s:
'''

FOOTER = '''
.section .rodata,"a"
.p2align 6
.amdhsa_kernel %s
  .amdhsa_next_free_vgpr %d
  .amdhsa_next_free_sgpr 64
  .amdhsa_accum_offset %d
  .amdhsa_group_segment_fixed_size 0
  .amdhsa_kernarg_size 48
  .amdhsa_user_sgpr_count 2
  .amdhsa_user_sgpr_kernarg_segment_ptr 1
  .amdhsa_system_sgpr_workgroup_id_x 1
.end_amdhsa_kernel
'''


def main():
    out = sys.argv[1] if len(sys.argv) > 1 else 'standalone__gqa_softmax__near_ridge.s'
    for kv in sys.argv[2:]:
        k, v = kv.split('=')
        CFG[k] = int(v)
    k = Kernel()
    body = k.build()
    with open(out, 'w') as f:
        f.write(HEADER % (LDS_BYTES, NAME, NAME, NAME))
        f.write(body)
        f.write(FOOTER % (NAME, NVGPR + NAGPR, NVGPR))
    print('wrote', out, len(k.a.ins), 'instructions')


if __name__ == '__main__':
    main()
```
